```python
import torch

def _softmax(x, axis=-1):
    return torch.softmax(x, dim=axis)
def _gelu(x):
    return torch.nn.functional.gelu(x, approximate="tanh")
def _silu(x):
    return torch.nn.functional.silu(x)
def _sigmoid(x):
    return torch.sigmoid(x)
def _layernorm(x, axis=-1, eps=1e-5):
    m = x.mean(dim=axis, keepdim=True)
    v = x.var(dim=axis, keepdim=True, unbiased=False)
    return (x - m) / torch.sqrt(v + eps)
def _scatter_add(tgt, idx, src, axis=0):
    return tgt.clone().index_add_(axis, idx, src)
def _segment_sum(src, seg, n):
    out = torch.zeros((n,) + src.shape[1:], dtype=src.dtype)
    return out.index_add_(0, seg, src)
def _pad(x, pw):
    flat = tuple(v for pair in reversed(pw) for v in pair)
    return torch.nn.functional.pad(x, flat)

kernel_name = 'recurrent_scan__sliding_block_cached__dense_activation_silu__prompt'

def setup_inputs():

    _w = (lambda a: (lambda t: t.to(torch.bfloat16) if t.is_floating_point() else t)(torch.as_tensor(a)))
    def _A_setup():
        B, Sq, D = 1, 2048, 1024
        Hq, Hkv, Sk, Dh = 32, 4, 2048, 128
        assert Hq % Hkv == 0, (Hq, Hkv)
        return {
            "x": _w((lambda *s: torch.randn(*s, dtype=torch.bfloat16) * 0.05)(B, Sq, D)),
            "k_cache": _w((lambda *s: torch.randn(*s, dtype=torch.bfloat16) * 3.2)(B, Hkv, Sk, Dh)),
            "v_cache": _w((lambda *s: torch.randn(*s, dtype=torch.bfloat16) * 3.2)(B, Hkv, Sk, Dh)),
            "wq": _w((lambda *s: torch.randn(*s, dtype=torch.bfloat16) * 3.2)(D, Hq * Dh) * (D ** -0.5)),
            "wo": _w((lambda *s: torch.randn(*s, dtype=torch.bfloat16) * 3.2)(Hq * Dh, D) * ((Hq * Dh) ** -0.5)),
        }
    _A_in = _A_setup()

    def _B_setup():
        B, S, D, F = 1, 2048, 1024, 3584
        return {
            "x": _w((lambda *s: torch.randn(*s, dtype=torch.bfloat16) * 0.05)(B, S, D)),
            "w1": _w((lambda *s: torch.randn(*s, dtype=torch.bfloat16) * 3.2)(D, F) * (D ** -0.5)),
            "w2": _w((lambda *s: torch.randn(*s, dtype=torch.bfloat16) * 0.4)(F, D) * (F ** -0.5)),
        }
    _B_in = _B_setup()

    return {
        "A_x": _A_in["x"],
        "A_k_cache": _A_in["k_cache"],
        "A_v_cache": _A_in["v_cache"],
        "A_wq": _A_in["wq"],
        "A_wo": _A_in["wo"],
        "B_x": _B_in["x"],
        "B_w1": _B_in["w1"],
        "B_w2": _B_in["w2"],
    }

def reference(A_x, A_k_cache, A_v_cache, A_wq, A_wo, B_x, B_w1, B_w2):
    def _A_ref(x, k_cache, v_cache, wq, wo):
        B, Sq, D = x.shape
        Hq, Dh = 32, 128
        Hkv, Sk = k_cache.shape[1], k_cache.shape[2]
        W = min(4096, max(256, Sk // 4))
        rep = Hq // Hkv
        q = (lambda x, *d: x.permute(*d))((x @ wq).reshape(B, Sq, Hq, Dh), 0, 2, 1, 3)
        k = (lambda x, n, axis: torch.repeat_interleave(x, n, dim=axis))(k_cache[:, :, Sk - W:, :], rep, axis=1)
        v = (lambda x, n, axis: torch.repeat_interleave(x, n, dim=axis))(v_cache[:, :, Sk - W:, :], rep, axis=1)
        scores = torch.einsum("bhqd,bhkd->bhqk", q, k) * (Dh ** -0.5)
        p = _softmax(scores, axis=-1)
        o = torch.einsum("bhqk,bhkd->bhqd", p, v)
        return (lambda x, *d: x.permute(*d))(o, 0, 2, 1, 3).reshape(B, Sq, Hq * Dh) @ wo

    def _B_ref(x, w1, w2):
        h = torch.einsum("bsd,df->bsf", x, w1)
        h = _silu(h)
        out = torch.einsum("bsf,fd->bsd", h, w2)
        return out

    x = A_x
    xn = _layernorm(x, axis=-1)
    s = _A_ref(xn, A_k_cache, A_v_cache, A_wq, A_wo)
    g = _silu(_B_ref(xn, B_w1, B_w2))
    return x + s * g
```

```python
import math
from gen import *

LOG2E = math.log2(math.e)
SCALE = 128 ** -0.5


def gen_k1(a, OPT):
    name = "up_kernel"
    RS = OPT["round_scores"]
    kernel_begin(a, name)
    a("s_cmp_ge_u32 s2, 256")
    a("s_cbranch_scc1 L_k1_end")
    a("s_load_dwordx2 s[4:5], s[0:1], 24")
    a("s_load_dwordx2 s[6:7], s[0:1], 48")
    a("s_load_dwordx2 s[8:9], s[0:1], 80")
    a("v_and_b32 v1, 63, v0")
    a("v_lshrrev_b32 v2, 6, v0")
    a("s_and_b32 s40, s2, 7")
    a("s_lshr_b32 s41, s2, 3")
    a("v_readfirstlane_b32 s34, v2")
    a("s_lshr_b32 s35, s40, 2")
    a("s_lshl_b32 s35, s35, 2")
    a("s_and_b32 s42, s41, 3")
    a("s_add_u32 s35, s35, s42")
    a("s_and_b32 s36, s40, 3")
    a("s_lshl_b32 s37, s36, 3")
    a("s_lshr_b32 s42, s41, 2")
    a("s_add_u32 s37, s37, s42")
    a("s_waitcnt lgkmcnt(0)")
    srd(a, 12, 4, 1024 * 8192)
    srd(a, 16, 6, 1024 * 7168)
    srd(a, 20, 8, WS_USED)
    a("s_lshl_b32 s30, s35, 2")
    a("s_add_u32 s30, s30, s34")
    a("s_lshl_b32 s30, s30, 17")
    if WS_XN:
        a(f"s_add_u32 s30, s30, {WS_XN:#x}")
    a("s_mov_b32 s24, s8")
    a("s_and_b32 s25, s9, 0xffff")
    a("s_add_u32 s26, s30, 0x20000")
    a("s_mov_b32 s27, 0x00020000")
    a("s_lshl_b32 s31, s36, 18")
    a(f"s_add_u32 s31, s31, {WS_KV:#x}")
    a("s_mov_b32 s44, s8")
    a("s_and_b32 s45, s9, 0xffff")
    a("s_add_u32 s46, s31, 0x40000")
    a("s_mov_b32 s47, 0x00020000")
    a("s_mov_b32 s48, s31")
    a("s_lshl_b32 s32, s34, 10")
    a("s_add_u32 s31, s31, s32")
    a("s_mov_b32 s38, s32")
    a("s_lshl_b32 s28, s37, 8")
    a("s_mul_i32 s29, s37, 224")
    a("v_lshrrev_b32 v8, 5, v1")
    a("v_bfe_u32 v9, v1, 2, 3")
    a("v_bfe_u32 v10, v1, 1, 1")
    a("v_lshrrev_b32 v11, 2, v9")
    a("v_xor_b32 v10, v10, v11")
    a("v_and_b32 v12, 1, v1")
    a("v_lshlrev_b32 v13, 6, v8")
    a("v_lshl_add_u32 v13, v10, 5, v13")
    a("v_lshl_add_u32 v13, v12, 4, v13")
    a("v_and_b32 v14, 1, v2")
    a("v_lshlrev_b32 v14, 4, v14")
    a("v_lshl_add_u32 v14, v11, 3, v14")
    a("v_lshrrev_b32 v15, 1, v2")
    a("v_lshl_add_u32 v14, v15, 2, v14")
    a("v_and_b32 v15, 3, v9")
    a("v_add_u32 v14, v14, v15")
    a("v_lshl_add_u32 v3, v14, 13, v13")
    a("v_mul_u32_u24 v4, 7168, v14")
    a("v_add_u32 v4, v4, v13")
    a("v_and_b32 v8, v8, v10")
    a("v_lshlrev_b32 v8, 30, v8")
    a("v_add_u32 v5, v4, v8")
    a("v_lshlrev_b32 v6, 4, v1")
    RING = 98304
    a("v_lshrrev_b32 v8, 5, v1")
    a("v_lshlrev_b32 v8, 10, v8")
    a("v_bfe_u32 v9, v1, 2, 3")
    a("v_lshl_add_u32 v8, v9, 6, v8")
    a("v_and_b32 v9, 3, v1")
    a("v_lshl_add_u32 v8, v9, 3, v8")
    a("v_bfe_u32 v9, v1, 4, 1")
    a("v_lshl_add_u32 v7, v9, 5, v8")
    a(f"v_add_u32 v7, {RING}, v7")
    a("v_xor_b32 v8, 32, v7")

    ACC = 16
    NB, D = 6, 4
    AF, BF = 0, 32
    R, P = 4, 3

    def acc(f, tt):
        return ACC + 16 * f + 4 * tt

    def batch_ops(slot, kv):
        ops = []
        for part, (vo0, vo1, sd, so) in enumerate(((3, 3, 12, 28), (4, 5, 16, 29))):
            for lc in range(2):
                m0 = RING + slot * 16384 + part * 8192 + lc * 4096 - lc * 128
                vo = vo1 if lc else vo0
                ops.append((f"s_add_u32 m0, s32, {m0:#x}",
                            [f"buffer_load_dwordx4 v{vo}, s[{sd}:{sd+3}], s{so} offen offset:{lc*128} lds"]))
            ops[-1][1].append(f"s_add_u32 s{so}, s{so}, {(32*8192, 32*7168)[part]:#x}")
        for tt in range(4):
            r = BF + slot * 16 + tt * 4
            ops.append((None, [f"buffer_load_dwordx4 a[{r}:{r+3}], v6, s[24:27], s30 offen offset:{tt*1024}"]))
        ops[-1][1].append("s_add_u32 s30, s30, 4096")
        if kv:
            ops.append(kv_op())
        return ops

    def kv_op():
        return ("s_mov_b32 m0, s38",
                ["buffer_load_dwordx4 v6, s[44:47], s31 offen lds",
                 "s_add_u32 s31, s31, 4096", "s_add_u32 s38, s38, 4096"])

    def tr_reads(step, f, fc):
        part, u = (0, f) if f < 8 else (1, f - 8)
        buf = AF + (fc % NB) * 4
        out = []
        for rho in range(2):
            off = step * 16384 + part * 8192 + (u >> 2) * 4096 + rho * 2048 + ((u >> 1) & 1) * 512
            out.append(f"ds_read_b64_tr_b16 a[{buf+2*rho}:{buf+2*rho+1}], v{7 + (u & 1)} offset:{off}")
        return out

    for st in range(P):
        for pre, ins in batch_ops(st, False):
            if pre:
                a(pre)
                a("s_nop 0")
            for i in ins:
                a(i)
    for i in range(240):
        a(f"v_mov_b32 v{ACC+i}, 0")
    a("s_mov_b32 s33, 8")
    a("s_waitcnt vmcnt(16)")
    a("s_barrier")
    for f in range(D):
        for ins in tr_reads(0, f, f):
            a(ins)
    a.raw(".p2align 6")
    a.label("L_k1_gemm")
    BARF = 6
    for st in range(R):
        kv = st < 3
        ops = batch_ops((st + P) % R, kv)
        kvprev = ((st - 1) % R) < 3
        for f in range(15):
            fc = st * 15 + f
            j = f + D
            rd = tr_reads((st + j // 15) % R, j % 15, fc + D)
            if f == BARF:
                a(f"s_waitcnt vmcnt({8 + (1 if kvprev else 0)})")
                a("s_barrier")
            a(f"s_waitcnt lgkmcnt({2*(D-1)})")
            buf = AF + (fc % NB) * 4
            op = None
            if f >= BARF and ops:
                op = ops.pop(0)
            for tt in range(4):
                b = BF + st * 16 + tt * 4
                c = acc(f, tt)
                a(f"v_mfma_f32_16x16x32_bf16 v[{c}:{c+3}], a[{buf}:{buf+3}], a[{b}:{b+3}], v[{c}:{c+3}]")
                if tt == 0:
                    a(rd[0])
                if tt == 1:
                    a(rd[1])
                    if op and op[0]:
                        a(op[0])
                if tt == 2 and op:
                    for i in op[1]:
                        a(i)
        assert not ops
    a("s_sub_u32 s33, s33, 1")
    a("s_cmp_lg_u32 s33, 0")
    a("s_cbranch_scc1 L_k1_gemm")
    a("s_waitcnt vmcnt(0) lgkmcnt(0)")
    a("s_barrier")
    for n in range(8):
        pre, ins = kv_op()
        a(pre)
        a("s_nop 0")
        for i in ins:
            a(i)
    a("s_mov_b32 s50, 0xffff0000")
    a(f"s_mov_b32 s51, {f32bits(-LOG2E):#x}")
    a("s_lshl_b32 s52, s35, 3")
    a("s_lshl_b32 s53, s34, 1")
    a("s_add_u32 s52, s52, s53")
    a("s_mul_i32 s53, s52, 229376")
    a("s_mul_i32 s54, s37, 7168")
    a("s_add_u32 s53, s53, s54")
    a(f"s_add_u32 s53, s53, {WS_H:#x}")
    a("s_add_u32 s54, s53, 4096")
    a("s_add_u32 s55, s53, 229376")
    a("s_add_u32 s56, s55, 4096")
    T = 8
    for u in range(7):
        for pair in range(2):
            base = acc(8 + u, 2 * pair)
            for q in range(4):
                a(f"v_cvt_pk_bf16_f32 v{T+q}, v{base+2*q}, v{base+2*q+1}")
            for q in range(4):
                a(f"v_lshlrev_b32 v{base+2*q}, 16, v{T+q}")
                a(f"v_and_b32 v{base+2*q+1}, s50, v{T+q}")
            for e in range(8):
                a(f"v_mul_f32 v{T+e}, s51, v{base+e}")
            for e in range(8):
                a(f"v_exp_f32 v{T+e}, v{T+e}")
            for e in range(8):
                a(f"v_add_f32 v{T+e}, 1.0, v{T+e}")
            for e in range(8):
                a(f"v_rcp_f32 v{T+e}, v{T+e}")
            for e in range(8):
                a(f"v_mul_f32 v{T+e}, v{T+e}, v{base+e}")
            for q in range(4):
                a(f"v_cvt_pk_bf16_f32 v{base+q}, v{T+2*q}, v{T+2*q+1}")
            a("s_nop 1")
            a(f"v_permlane16_swap_b32 v{base}, v{base+2}")
            a(f"v_permlane16_swap_b32 v{base+1}, v{base+3}")
            so = 53 + 2 * pair + (1 if u >= 4 else 0)
            a(f"buffer_store_dwordx4 v[{base}:{base+3}], v6, s[20:23], s{so} offen offset:{(u&3)*1024}")
    QB = 96
    for ks in range(8):
        for qt in range(2):
            base = acc(ks, 2 * qt)
            for q in range(4):
                a(f"v_cvt_pk_bf16_f32 v{base+q}, v{base+2*q}, v{base+2*q+1}")
            a("s_nop 1")
            a(f"v_permlane16_swap_b32 v{base}, v{base+2}")
            a(f"v_permlane16_swap_b32 v{base+1}, v{base+3}")
            a("s_nop 0")
            for q in range(4):
                a(f"v_accvgpr_write_b32 a{QB+(qt*8+ks)*4+q}, v{base+q}")

    OB, SB, PB = 128, 32, 96
    L0, NM0 = 10, 12
    VT = 14
    TMP = 16
    DA = 4

    def O(dt, qt):
        return OB + (dt * 2 + qt) * 16

    def S(b, qt):
        return SB + (b * 2 + qt) * 16

    def Pr(b, qt, kh):
        return PB + b * 16 + qt * 8 + kh * 4

    def Q(qt, ks):
        return QB + (qt * 8 + ks) * 4

    CEXP = SCALE * LOG2E if RS < 2 else LOG2E
    a(f"s_mov_b32 s57, {f32bits(CEXP):#x}")
    a(f"s_mov_b32 s58, {f32bits(SCALE):#x}")
    a("s_mov_b32 s60, 0")
    a("s_mov_b32 s61, 16384")
    a(f"v_mov_b32 v{VT}, v6")
    a(f"v_add_u32 v{VT+1}, 16384, v6")
    a(f"v_mov_b32 v{L0}, 0")
    a(f"v_mov_b32 v{L0+1}, 0")

    def valu_list(b):
        pairs = []
        for p in range(16):
            kh, qt, j2 = p >> 3, (p >> 2) & 1, p & 3
            r0 = S(b, qt) + 8 * kh + 2 * j2
            r1 = r0 + 1
            dst = Pr(b, qt, kh) + j2
            t = TMP + (p % 4)
            st = []
            if RS >= 1:
                st.append([f"v_cvt_pk_bf16_f32 v{t}, v{r0}, v{r1}"])
                st.append([f"v_lshlrev_b32 v{r0}, 16, v{t}", f"v_and_b32 v{r1}, s50, v{t}"])
            if RS >= 2:
                t2 = TMP + 4 + (p % 4)
                st.append([f"v_mul_f32 v{r0}, s58, v{r0}", f"v_mul_f32 v{r1}, s58, v{r1}"])
                st.append([f"v_cvt_pk_bf16_f32 v{t2}, v{r0}, v{r1}"])
                st.append([f"v_lshlrev_b32 v{r0}, 16, v{t2}", f"v_and_b32 v{r1}, s50, v{t2}"])
            st.append([f"v_fma_f32 v{r0}, v{r0}, s57, v{NM0+qt}", f"v_fma_f32 v{r1}, v{r1}, s57, v{NM0+qt}"])
            st.append([f"v_exp_f32 v{r0}, v{r0}", f"v_exp_f32 v{r1}, v{r1}"])
            st.append([f"v_add_f32 v{L0+qt}, v{L0+qt}, v{r0}",
                       f"v_cvt_pk_bf16_f32 v{dst}, v{r0}, v{r1}",
                       f"v_add_f32 v{L0+qt}, v{L0+qt}, v{r1}"])
            pairs.append(st)
        ns = len(pairs[0])
        out = []
        for k in range(16 + ns - 1):
            for s in range(ns):
                p = k - s
                if 0 <= p < 16:
                    for ins in pairs[p][s]:
                        out.append((ins, p if s == ns - 1 else -1))
        return out

    def frag_read(i, F):
        buf = (F % 8) * 4
        if F < 8:
            return f"ds_read_b128 a[{buf}:{buf+3}], v{VT + (i & 1)} offset:{F*1024}"
        return f"ds_read_b128 a[{buf}:{buf+3}], v{VT + ((i - 1) & 1)} offset:{8192 + (F-8)*1024}"

    def tile_advance(b):
        return [f"s_add_u32 s{60+b}, s{60+b}, 32768",
                f"s_sub_u32 s62, s{60+b}, 163840",
                f"s_cmp_ge_u32 s{60+b}, 163840",
                f"s_cselect_b32 s{60+b}, s62, s{60+b}",
                f"v_add_u32 v{VT+b}, s{60+b}, v6"]

    def mfma_qk(i, slot):
        ks, qt = slot >> 1, slot & 1
        s = S(i & 1, qt)
        buf = (ks % 8) * 4
        c = "0" if ks == 0 else f"v[{s}:{s+15}]"
        q = Q(qt, ks)
        return f"v_mfma_f32_32x32x16_bf16 v[{s}:{s+15}], a[{buf}:{buf+3}], a[{q}:{q+3}], {c}"

    def mfma_pv(i, slot, first):
        kh, dt, qt = slot >> 3, (slot >> 1) & 3, slot & 1
        o = O(dt, qt)
        buf = (((8 + kh * 4 + dt)) % 8) * 4
        p = Pr(i & 1, qt, kh)
        c = "0" if (first and kh == 0) else f"v[{o}:{o+15}]"
        return f"v_mfma_f32_32x32x16_bf16 v[{o}:{o+15}], a[{buf}:{buf+3}], v[{p}:{p+3}], {c}"

    NV = len(valu_list(0))
    LAG = 3

    def emit_iter(i, carry, first_pv=False, has_qk=True, has_pv=True, next_qk=True, extra=None):
        extra = extra or {}
        slots = []
        if has_qk:
            slots += [("qk", s) for s in range(16)]
        if has_pv:
            slots += [("pv", s) for s in range(16)]
        cur = list(carry)
        new = valu_list(i & 1) if has_qk else []
        per = NV / 32.0
        acc_ = 0.0
        for kind, s in slots:
            F = (s >> 1) + (0 if kind == "qk" else 8)
            if s % 2 == 0:
                a(f"s_waitcnt lgkmcnt({DA-1})")
            if kind == "pv":
                kh = s >> 3
                need = 8 * kh + 7
                while any(0 <= tag <= need for _, tag in cur):
                    a(cur.pop(0)[0])
                    if not any(0 <= tag <= need for _, tag in cur):
                        a("s_nop 1")
                a(mfma_pv(i - 1, s, first_pv))
            else:
                a(mfma_qk(i, s))
            if s % 2 == 0:
                G = F + DA
                if G < 16:
                    if G >= 8 and not has_pv:
                        pass
                    else:
                        a(frag_read(i, G))
                elif next_qk:
                    if G == 16:
                        for ins in tile_advance((i + 1) & 1) if i >= 1 else []:
                            a(ins)
                    a(frag_read(i + 1, G - 16))
            for ins in extra.get((kind, s), []):
                a(ins)
            acc_ += per
            n = int(acc_)
            acc_ -= n
            for _ in range(n):
                if cur:
                    a(cur.pop(0)[0])
                elif kind == "pv" and s >= LAG and new:
                    a(new.pop(0)[0])
        while cur:
            a(cur.pop(0)[0])
        return new

    for F in range(DA):
        a(frag_read(0, F))
    for s in range(16):
        F = s >> 1
        if s % 2 == 0:
            a(f"s_waitcnt lgkmcnt({DA-1})")
        a(mfma_qk(0, s))
        if s % 2 == 0:
            G = F + DA
            a(frag_read(0, G) if G < 8 else frag_read(1, G - 8))
    a("s_nop 15")

    def rowmax(b, dst0):
        for qt in range(2):
            s = S(b, qt)
            d = dst0 + qt
            a(f"v_max3_f32 v{d}, v{s}, v{s+1}, v{s+2}")
            for r in range(3, 15, 2):
                a(f"v_max3_f32 v{d}, v{d}, v{s+r}, v{s+r+1}")
            a(f"v_max_f32 v{d}, v{d}, v{s+15}")

    def finish_max(m0):
        for qt in range(2):
            a(f"v_mov_b32 v{TMP+8+qt}, v{m0+qt}")
        a("s_nop 1")
        for qt in range(2):
            a(f"v_permlane32_swap_b32 v{m0+qt}, v{TMP+8+qt}")
        a("s_nop 1")
        for qt in range(2):
            a(f"v_max_f32 v{m0+qt}, v{m0+qt}, v{TMP+8+qt}")
            a(f"v_mul_f32 v{NM0+qt}, {f32bits(-SCALE*LOG2E):#x}, v{m0+qt}")

    rowmax(0, TMP + 10)
    finish_max(TMP + 10)
    pend = valu_list(0)
    nfirst = int(NV * (16 - LAG) / 32.0)
    for _ in range(nfirst):
        a(pend.pop(0)[0])
    pend = emit_iter(1, pend, first_pv=True)
    pend_len = len(pend)
    a("s_mov_b32 s33, 7")
    a.raw(".p2align 6")
    a.label("L_k1_att")
    a("s_waitcnt vmcnt(0)")
    a("s_barrier")
    ex = {}
    for n in range(8):
        pre, ins = kv_op()
        ex[("qk", 2 * n)] = [pre]
        ex[("qk", 2 * n + 1)] = list(ins)
    ex[("pv", 1)] = ["s_sub_u32 s62, s38, 163840", "s_cmp_ge_u32 s38, 163840", "s_cselect_b32 s38, s62, s38"]
    pend = emit_iter(2, pend, extra=ex)
    assert len(pend) == pend_len
    pend = emit_iter(3, pend)
    assert len(pend) == pend_len
    a("s_sub_u32 s33, s33, 1")
    a("s_cmp_lg_u32 s33, 0")
    a("s_cbranch_scc1 L_k1_att")
    a("s_waitcnt lgkmcnt(0)")
    for F in range(8, 8 + DA):
        a(frag_read(16, F))
    while pend:
        a(pend.pop(0)[0])
    a("s_nop 1")
    for s in range(16):
        F = 8 + (s >> 1)
        if s % 2 == 0:
            rem = min(DA - 1, 15 - F)
            a(f"s_waitcnt lgkmcnt({rem})")
        a(mfma_pv(15, s, False))
        if s % 2 == 0 and F + DA < 16:
            a(frag_read(16, F + DA))
    for qt in range(2):
        a(f"v_mov_b32 v{TMP+qt}, v{L0+qt}")
    a("s_nop 1")
    for qt in range(2):
        a(f"v_permlane32_swap_b32 v{L0+qt}, v{TMP+qt}")
    a("s_nop 1")
    for qt in range(2):
        a(f"v_add_f32 v{L0+qt}, v{L0+qt}, v{TMP+qt}")
    a(f"v_max_f32 v{TMP}, v{L0}, v{L0+1}")
    a(f"v_add_f32 v{TMP+1}, v{L0}, v{L0+1}")
    a(f"v_mov_b32 v{TMP+2}, {f32bits(2.0**100):#x}")
    a(f"v_cmp_nlt_f32 vcc, v{TMP+1}, v{TMP+2}")
    a("s_nop 4")
    a("s_cbranch_vccnz L_k1_slow")
    a.label("L_k1_fin")
    for qt in range(2):
        a(f"v_rcp_f32 v{L0+qt}, v{L0+qt}")
    a("s_lshl_b32 s53, s52, 18")
    a("s_lshl_b32 s54, s37, 13")
    a("s_add_u32 s53, s53, s54")
    a(f"s_add_u32 s53, s53, {WS_O:#x}")
    a("s_add_u32 s54, s53, 4096")
    a("s_add_u32 s55, s53, 0x40000")
    a("s_add_u32 s56, s55, 4096")
    a("s_nop 7")
    for dt in range(4):
        for qt in range(2):
            o = O(dt, qt)
            for r in range(16):
                a(f"v_mul_f32 v{o+r}, v{o+r}, v{L0+qt}")
            for r in range(8):
                a(f"v_cvt_pk_bf16_f32 v{o+r}, v{o+2*r}, v{o+2*r+1}")
            for e in range(2):
                fi = 2 * dt + e
                so = 53 + 2 * qt + (1 if fi >= 4 else 0)
                a(f"buffer_store_dwordx4 v[{o+4*e}:{o+4*e+3}], v6, s[20:23], s{so} offen offset:{(fi&3)*1024}")
    a.label("L_k1_end")
    a("s_endpgm")

    a.label("L_k1_slow")
    M0 = TMP + 12
    a("s_waitcnt vmcnt(0) lgkmcnt(0)")
    a(f"v_mov_b32 v{M0}, 0xff800000")
    a(f"v_mov_b32 v{M0+1}, 0xff800000")
    a("s_mov_b32 s33, 16")
    a("s_mov_b32 s63, s48")
    a.label("L_k1_slow_max")
    a("s_add_u32 s64, s63, 4096")
    for ks in range(8):
        so = 63 if ks < 4 else 64
        a(f"buffer_load_dwordx4 a[{ks*4}:{ks*4+3}], v6, s[44:47], s{so} offen offset:{(ks&3)*1024}")
    a("s_waitcnt vmcnt(0)")
    for s in range(16):
        a(mfma_qk(0, s))
    a("s_nop 15")
    rowmax(0, TMP + 10)
    for qt in range(2):
        a(f"v_max_f32 v{M0+qt}, v{M0+qt}, v{TMP+10+qt}")
    a("s_add_u32 s63, s63, 16384")
    a("s_sub_u32 s33, s33, 1")
    a("s_cmp_lg_u32 s33, 0")
    a("s_cbranch_scc1 L_k1_slow_max")
    finish_max(M0)
    for r in range(128):
        a(f"v_mov_b32 v{OB+r}, 0")
    a(f"v_mov_b32 v{L0}, 0")
    a(f"v_mov_b32 v{L0+1}, 0")
    a("s_mov_b32 s33, 16")
    a("s_mov_b32 s63, s48")
    a.label("L_k1_slow_pv")
    a("s_add_u32 s64, s63, 4096")
    for ks in range(8):
        so = 63 if ks < 4 else 64
        a(f"buffer_load_dwordx4 a[{ks*4}:{ks*4+3}], v6, s[44:47], s{so} offen offset:{(ks&3)*1024}")
    a("s_waitcnt vmcnt(0)")
    for s in range(16):
        a(mfma_qk(0, s))
    a("s_add_u32 s65, s63, 8192")
    a("s_add_u32 s64, s63, 12288")
    a("s_nop 15")
    for ks in range(8):
        so = 65 if ks < 4 else 64
        a(f"buffer_load_dwordx4 a[{ks*4}:{ks*4+3}], v6, s[44:47], s{so} offen offset:{(ks&3)*1024}")
    for ins, _ in valu_list(0):
        a(ins)
    a("s_waitcnt vmcnt(0)")
    a("s_nop 1")
    for s in range(16):
        a(mfma_pv(0, s, False))
    a("s_nop 15")
    a("s_add_u32 s63, s63, 16384")
    a("s_sub_u32 s33, s33, 1")
    a("s_cmp_lg_u32 s33, 0")
    a("s_cbranch_scc1 L_k1_slow_pv")
    for qt in range(2):
        a(f"v_mov_b32 v{TMP+qt}, v{L0+qt}")
    a("s_nop 1")
    for qt in range(2):
        a(f"v_permlane32_swap_b32 v{L0+qt}, v{TMP+qt}")
    a("s_nop 1")
    for qt in range(2):
        a(f"v_add_f32 v{L0+qt}, v{L0+qt}, v{TMP+qt}")
    a("s_branch L_k1_fin")
    return name, (256, 160, 72)
```

```python
import sys, math, struct

NAME = "recurrent_scan__sliding_block_cached__dense_activation_silu__prompt"

WS_XN = 0
WS_KV = 4 << 20
WS_O = 8 << 20
WS_H = 24 << 20
WS_T = 40 << 20
WS_USED = 64 << 20

OPT = dict(
    round_scores=0,
)


def f32bits(x):
    return struct.unpack("<I", struct.pack("<f", x))[0]


class Asm:
    def __init__(self):
        self.lines = []

    def __call__(self, s):
        self.lines.append("    " + s)

    def label(self, l):
        self.lines.append(l + ":")

    def raw(self, s):
        self.lines.append(s)

    def comment(self, s):
        self.lines.append("    ; " + s)

    def text(self):
        return "\n".join(self.lines) + "\n"


def vr(i, n=1):
    return f"v{i}" if n == 1 else f"v[{i}:{i+n-1}]"


def ar(i, n=1):
    return f"a{i}" if n == 1 else f"a[{i}:{i+n-1}]"


def sr(i, n=1):
    return f"s{i}" if n == 1 else f"s[{i}:{i+n-1}]"


def kernel_begin(a, name):
    a.raw(f".globl {name}")
    a.raw(".p2align 8")
    a.raw(f".type {name},@function")
    a.label(name)


def kd(a, name, vgprs, agprs, sgprs):
    acc = (vgprs + 3) // 4 * 4
    nfv = acc + agprs if agprs else vgprs
    a.raw(".p2align 6")
    a.raw(f".amdhsa_kernel {name}")
    a.raw(f"  .amdhsa_next_free_vgpr {nfv}")
    a.raw(f"  .amdhsa_next_free_sgpr {sgprs}")
    a.raw(f"  .amdhsa_accum_offset {acc}")
    a.raw("  .amdhsa_group_segment_fixed_size 0")
    a.raw("  .amdhsa_kernarg_size 88")
    a.raw("  .amdhsa_user_sgpr_count 2")
    a.raw("  .amdhsa_user_sgpr_kernarg_segment_ptr 1")
    a.raw("  .amdhsa_system_sgpr_workgroup_id_x 1")
    a.raw("  .amdhsa_float_denorm_mode_32 3")
    a.raw("  .amdhsa_float_denorm_mode_16_64 3")
    a.raw(".end_amdhsa_kernel")


def srd(a, d, base, nbytes):
    a(f"s_mov_b32 s{d}, s{base}")
    a(f"s_and_b32 s{d+1}, s{base+1}, 0xffff")
    a(f"s_mov_b32 s{d+2}, {nbytes:#x}")
    a(f"s_mov_b32 s{d+3}, 0x00020000")


def wave_reduce_rows8(a, v, t):
    a("s_nop 1")
    a(f"v_add_f32_dpp v{v}, v{v}, v{v} row_ror:8 row_mask:0xf bank_mask:0xf")
    a(f"v_mov_b32 v{t}, v{v}")
    a("s_nop 1")
    a(f"v_permlane16_swap_b32 v{v}, v{t}")
    a("s_nop 1")
    a(f"v_add_f32 v{v}, v{v}, v{t}")
    a(f"v_mov_b32 v{t}, v{v}")
    a("s_nop 1")
    a(f"v_permlane32_swap_b32 v{v}, v{t}")
    a("s_nop 1")
    a(f"v_add_f32 v{v}, v{v}, v{t}")


def round_bf16(a, d, s):
    a(f"v_cvt_pk_bf16_f32 v{d}, v{s}, v{s}")
    a(f"v_lshlrev_b32 v{d}, 16, v{d}")


def gen_k0(a):
    name = "prep_kernel"
    kernel_begin(a, name)
    a("s_cmp_ge_u32 s2, 384")
    a("s_cbranch_scc1 L_k0_end")
    a("s_load_dwordx2 s[4:5], s[0:1], 0")
    a("s_load_dwordx4 s[8:11], s[0:1], 8")
    a("s_load_dwordx2 s[6:7], s[0:1], 80")
    a("v_and_b32 v1, 63, v0")
    a("v_lshrrev_b32 v2, 6, v0")
    a("s_waitcnt lgkmcnt(0)")
    srd(a, 16, 6, WS_USED)
    a("s_cmp_ge_u32 s2, 256")
    a("s_cbranch_scc1 L_k0_kv")
    srd(a, 12, 4, 2048 * 2048)
    a("v_and_b32 v3, 7, v1")
    a("v_lshrrev_b32 v4, 3, v1")
    a("v_lshlrev_b32 v5, 5, v2")
    a("v_add_u32 v5, v5, v4")
    a("v_lshlrev_b32 v5, 4, v5")
    a("v_lshl_add_u32 v5, v3, 11, v5")
    a("s_lshl_b32 s20, s2, 14")
    for i in range(4):
        a(f"buffer_load_dwordx4 v[{16+4*i}:{19+4*i}], v5, s[12:15], s20 offen offset:{128*i}")
    a("v_lshrrev_b32 v6, 2, v4")
    a("v_lshl_add_u32 v6, v2, 3, v6")
    a("v_lshlrev_b32 v6, 12, v6")
    a("v_and_b32 v7, 3, v4")
    a("v_lshl_add_u32 v6, v7, 8, v6")
    a("v_lshl_add_u32 v6, v3, 4, v6")
    a("s_lshr_b32 s21, s2, 3")
    a("s_lshl_b32 s21, s21, 17")
    a("s_lshr_b32 s22, s2, 1")
    a("s_and_b32 s22, s22, 3")
    a("s_lshl_b32 s22, s22, 10")
    a("s_add_u32 s21, s21, s22")
    a("s_and_b32 s22, s2, 1")
    a("s_lshl_b32 s22, s22, 7")
    a("s_add_u32 s21, s21, s22")
    if WS_XN:
        a(f"s_add_u32 s21, s21, {WS_XN:#x}")
    a("s_add_u32 s22, s21, 8192")
    a("s_add_u32 s23, s21, 16384")
    a("s_add_u32 s24, s21, 24576")
    a("v_lshlrev_b32 v8, 2, v3")
    a("v_add_u32 v8, v8, v2")
    a("v_lshlrev_b32 v8, 2, v8")
    a("v_lshlrev_b32 v9, 4, v3")
    a("s_mov_b32 s25, 0xffff0000")
    for i in range(4):
        a(f"s_waitcnt vmcnt({3-i})")
        for j in range(4):
            a(f"v_lshlrev_b32 v{32+8*i+2*j}, 16, v{16+4*i+j}")
            a(f"v_and_b32 v{33+8*i+2*j}, s25, v{16+4*i+j}")
    for j in range(4):
        a(f"v_add_f32 v{10+j}, v{32+j}, v{36+j}")
    for b in range(2, 8):
        for j in range(4):
            a(f"v_add_f32 v{10+j}, v{10+j}, v{32+4*b+j}")
    a("v_add_f32 v10, v10, v11")
    a("v_add_f32 v12, v12, v13")
    a("v_add_f32 v10, v10, v12")
    wave_reduce_rows8(a, 10, 11)
    a("ds_write_b32 v8, v10")
    a("s_waitcnt lgkmcnt(0)")
    a("s_barrier")
    a("ds_read_b128 v[12:15], v9")
    a("s_waitcnt lgkmcnt(0)")
    a("v_add_f32 v12, v12, v13")
    a("v_add_f32 v14, v14, v15")
    a("v_add_f32 v10, v12, v14")
    a(f"v_mul_f32 v10, {f32bits(1.0/1024):#x}, v10")
    for j in range(4):
        a(f"v_sub_f32 v{16+j}, v{32+j}, v10")
        a(f"v_mul_f32 v{12+j}, v{16+j}, v{16+j}")
    for b in range(1, 8):
        for j in range(4):
            a(f"v_sub_f32 v{16+j}, v{32+4*b+j}, v10")
            a(f"v_fmac_f32 v{12+j}, v{16+j}, v{16+j}")
    a("v_add_f32 v12, v12, v13")
    a("v_add_f32 v14, v14, v15")
    a("v_add_f32 v12, v12, v14")
    wave_reduce_rows8(a, 12, 11)
    a("ds_write_b32 v8, v12 offset:128")
    a("s_waitcnt lgkmcnt(0)")
    a("s_barrier")
    a("ds_read_b128 v[12:15], v9 offset:128")
    a("s_waitcnt lgkmcnt(0)")
    a("v_add_f32 v12, v12, v13")
    a("v_add_f32 v14, v14, v15")
    a("v_add_f32 v12, v12, v14")
    a(f"v_mul_f32 v12, {f32bits(1.0/1024):#x}, v12")
    round_bf16(a, 10, 10)
    round_bf16(a, 12, 12)
    a(f"v_add_f32 v12, {f32bits(1e-5):#x}, v12")
    round_bf16(a, 12, 12)
    a("v_sqrt_f32 v12, v12")
    a("s_nop 0")
    round_bf16(a, 12, 12)
    a("v_rcp_f32 v12, v12")
    a("s_nop 0")
    for i in range(4):
        for j in range(4):
            x0, x1 = 32 + 8 * i + 2 * j, 33 + 8 * i + 2 * j
            a(f"v_sub_f32 v{x0}, v{x0}, v10")
            a(f"v_sub_f32 v{x1}, v{x1}, v10")
            a(f"v_cvt_pk_bf16_f32 v{x0}, v{x0}, v{x1}")
            a(f"v_and_b32 v{x1}, s25, v{x0}")
            a(f"v_lshlrev_b32 v{x0}, 16, v{x0}")
            a(f"v_mul_f32 v{x0}, v{x0}, v12")
            a(f"v_mul_f32 v{x1}, v{x1}, v12")
            a(f"v_cvt_pk_bf16_f32 v{16+4*i+j}, v{x0}, v{x1}")
        a(f"buffer_store_dwordx4 v[{16+4*i}:{19+4*i}], v6, s[16:19], s{21+i} offen")
    a("s_endpgm")
    a.label("L_k0_kv")
    srd(a, 12, 8, 4 * 2048 * 256)
    srd(a, 20, 10, 4 * 2048 * 256)
    a("v_readfirstlane_b32 s24, v2")
    a("s_sub_u32 s25, s2, 256")
    a("s_lshl_b32 s25, s25, 2")
    a("s_add_u32 s25, s25, s24")
    a("s_lshr_b32 s26, s25, 7")
    a("s_lshr_b32 s27, s25, 3")
    a("s_and_b32 s27, s27, 15")
    a("s_and_b32 s28, s25, 7")
    a("s_lshl_b32 s29, s26, 11")
    a("s_lshl_b32 s30, s27, 5")
    a("s_add_u32 s29, s29, s30")
    a("s_add_u32 s29, s29, 1536")
    a("s_lshl_b32 s29, s29, 8")
    a("v_and_b32 v3, 31, v1")
    a("v_lshrrev_b32 v4, 5, v1")
    a("v_lshlrev_b32 v5, 8, v3")
    a("v_lshl_add_u32 v5, v4, 4, v5")
    a("s_lshl_b32 s30, s28, 5")
    a("s_add_u32 s30, s30, s29")
    a("buffer_load_dwordx4 v[8:11], v5, s[12:15], s30 offen")
    a("v_and_b32 v6, 0x13, v3")
    a("v_and_b32 v7, 4, v3")
    a("v_lshl_or_b32 v6, v7, 1, v6")
    a("v_and_b32 v7, 8, v3")
    a("v_lshrrev_b32 v7, 1, v7")
    a("v_or_b32 v6, v6, v7")
    a("v_lshlrev_b32 v6, 1, v6")
    a("v_lshl_add_u32 v6, v4, 10, v6")
    a("s_lshr_b32 s30, s28, 2")
    a("s_lshl_b32 s30, s30, 12")
    a("s_and_b32 s31, s28, 3")
    a("s_lshl_b32 s31, s31, 6")
    a("s_add_u32 s30, s30, s31")
    a("s_add_u32 s30, s30, s29")
    for jj in range(8):
        off = (8 * (jj >> 2) + (jj & 3)) * 256
        a(f"buffer_load_ushort v{16+jj}, v6, s[20:23], s30 offen offset:{off}")
    a("s_lshr_b32 s30, s25, 3")
    a("s_lshl_b32 s30, s30, 14")
    a("s_lshl_b32 s31, s28, 10")
    a("s_add_u32 s30, s30, s31")
    a(f"s_add_u32 s30, s30, {WS_KV:#x}")
    a("s_add_u32 s31, s30, 8192")
    a("v_lshlrev_b32 v7, 4, v1")
    a("s_waitcnt vmcnt(8)")
    a("buffer_store_dwordx4 v[8:11], v7, s[16:19], s30 offen")
    a("s_waitcnt vmcnt(1)")
    for q in range(4):
        a(f"v_lshl_or_b32 v{12+q}, v{17+2*q}, 16, v{16+2*q}")
    a("buffer_store_dwordx4 v[12:15], v7, s[16:19], s31 offen")
    a.label("L_k0_end")
    a("s_endpgm")
    return name, (64, 0, 40)


def gen_k2(a):
    name = "down_kernel"
    D = 6
    NB = 8
    R = 8
    P = 7
    ACC = 64
    AF = 0
    BF = 32
    kernel_begin(a, name)
    a("s_cmp_ge_u32 s2, 256")
    a("s_cbranch_scc1 L_k2_end")
    a("s_load_dwordx2 s[4:5], s[0:1], 32")
    a("s_load_dwordx2 s[6:7], s[0:1], 56")
    a("s_load_dwordx2 s[8:9], s[0:1], 80")
    a("s_load_dwordx2 s[10:11], s[0:1], 0")
    a("s_load_dwordx4 s[40:43], s[0:1], 64")
    a("v_and_b32 v1, 63, v0")
    a("v_lshrrev_b32 v2, 6, v0")
    a("s_and_b32 s20, s2, 7")
    a("s_lshr_b32 s21, s2, 3")
    a("v_readfirstlane_b32 s22, v2")
    a("s_lshr_b32 s23, s20, 2")
    a("s_and_b32 s24, s20, 3")
    a("s_lshl_b32 s24, s24, 2")
    a("s_and_b32 s25, s21, 3")
    a("s_add_u32 s24, s24, s25")
    a("s_lshr_b32 s25, s21, 2")
    a("s_lshl_b32 s26, s24, 2")
    a("s_add_u32 s26, s26, s22")
    a("s_waitcnt lgkmcnt(0)")
    a("s_cmp_eq_u32 s23, 0")
    a("s_cselect_b32 s12, s4, s6")
    a("s_cselect_b32 s13, s5, s7")
    a("s_cselect_b32 s29, 8, 7")
    a(f"s_cselect_b32 s28, {WS_O>>20}, {WS_H>>20}")
    a("s_lshl_b32 s28, s28, 20")
    a("s_lshl_b32 s14, s29, 20")
    a("s_lshl_b32 s27, s29, 15")
    a("s_and_b32 s13, s13, 0xffff")
    a("s_mov_b32 s15, 0x00020000")
    a("s_mul_i32 s30, s26, s27")
    a("s_add_u32 s30, s30, s28")
    a("s_mov_b32 s16, s8")
    a("s_and_b32 s17, s9, 0xffff")
    a("s_add_u32 s18, s30, s27")
    a("s_mov_b32 s19, 0x00020000")
    a("s_lshl_b32 s31, s25, 8")
    a("s_add_u32 s32, s31, 0x10000")
    a("s_lshl_b32 s33, s22, 11")
    a("v_bfe_u32 v3, v1, 2, 3")
    a("v_lshl_add_u32 v3, v2, 3, v3")
    a("v_lshlrev_b32 v3, 11, v3")
    a("v_lshrrev_b32 v4, 5, v1")
    a("v_lshl_add_u32 v3, v4, 6, v3")
    a("v_and_b32 v5, 3, v1")
    a("v_lshl_add_u32 v3, v5, 4, v3")
    a("v_lshlrev_b32 v6, 4, v1")
    a("v_lshlrev_b32 v7, 11, v4")
    a("v_bfe_u32 v8, v1, 2, 2")
    a("v_lshl_add_u32 v7, v8, 6, v7")
    a("v_bfe_u32 v8, v1, 4, 1")
    a("v_lshl_add_u32 v7, v8, 5, v7")
    a("v_and_b32 v8, 1, v1")
    a("v_lshl_add_u32 v7, v8, 4, v7")
    a("v_bfe_u32 v8, v1, 1, 1")
    a("v_lshl_add_u32 v7, v8, 3, v7")
    a("v_add_u32 v8, 0x10000, v7")

    def batch_ops(slot):
        ops = []
        for (so, rgoff) in ((31, 0), (32, 8192)):
            for lc in range(2):
                m0 = slot * 16384 + rgoff + lc * 1024 - lc * 128
                ops.append([f"s_add_u32 m0, s33, {m0:#x}",
                            None,
                            f"buffer_load_dwordx4 v3, s[12:15], s{so} offen offset:{lc*128} lds"])
        ops[-1] += ["s_add_u32 s31, s31, 0x20000", "s_add_u32 s32, s32, 0x20000"]
        for ks in range(4):
            r = BF + slot * 16 + ks * 4
            ops.append([f"buffer_load_dwordx4 a[{r}:{r+3}], v6, s[16:19], s30 offen offset:{ks*1024}"])
        ops[-1] += ["s_add_u32 s30, s30, 4096"]
        return ops

    def tr_reads(stage, i):
        ks, t = i >> 2, i & 3
        buf = AF + ((stage * 16 + i) % NB) * 4
        out = []
        for rho in range(2):
            off = stage * 16384 + ks * 4096 + (t >> 1) * 1024 + (t & 1) * 512 + rho * 256
            v = 7
            if off >= 65536:
                off -= 65536
                v = 8
            out.append(f"ds_read_b64_tr_b16 a[{buf+2*rho}:{buf+2*rho+1}], v{v} offset:{off}")
        return out

    for st in range(P):
        for g in batch_ops(st):
            for ins in g:
                a(ins if ins else "s_nop 0")
    for i in range(64):
        a(f"v_mov_b32 v{ACC+i}, 0")
    a(f"s_waitcnt vmcnt({8*(P-1)})")
    a("s_barrier")
    for i in range(D):
        for ins in tr_reads(0, i):
            a(ins)
    a.raw(".p2align 6")
    a.label("L_k2_loop")
    for st in range(R):
        ops = batch_ops((st + P) % R)
        for i in range(16):
            ks, t = i >> 2, i & 3
            j = i + D
            rd = tr_reads((st + j // 16) % R, j % 16)
            if i == 8:
                a(f"s_waitcnt vmcnt({8*(P-2)})")
                a("s_barrier")
            extra = ops[i - 8] if i >= 8 else []
            pre = []
            if extra and extra[1:2] == [None]:
                pre = [extra[0]]
                extra = extra[2:]
            for ins in pre:
                a(ins)
            a(rd[0])
            a(rd[1])
            a(f"s_waitcnt lgkmcnt({2*D})")
            buf = AF + ((st * 16 + i) % NB) * 4
            b = BF + st * 16 + ks * 4
            acc = ACC + 16 * t
            a(f"v_mfma_f32_32x32x16_bf16 v[{acc}:{acc+15}], a[{buf}:{buf+3}], a[{b}:{b+3}], v[{acc}:{acc+15}]")
            for ins in extra:
                a(ins)
    a("s_sub_u32 s29, s29, 1")
    a("s_cmp_lg_u32 s29, 0")
    a("s_cbranch_scc1 L_k2_loop")
    a("s_waitcnt vmcnt(0) lgkmcnt(0)")
    srd(a, 44, 10, 2048 * 2048)
    srd(a, 48, 40, 2048 * 2048)
    srd(a, 52, 42, 256)
    a(f"s_mov_b32 s18, {WS_USED:#x}")
    a("v_and_b32 v9, 31, v1")
    a("v_lshlrev_b32 v9, 11, v9")
    a("v_lshl_add_u32 v9, v4, 4, v9")
    a("s_lshl_b32 s34, s26, 16")
    a("s_lshl_b32 s35, s25, 8")
    a("s_add_u32 s34, s34, s35")
    for q in range(8):
        a(f"buffer_load_dwordx4 v[{128+4*q}:{131+4*q}], v9, s[44:47], s34 offen offset:{q*32}")
    a("s_mov_b32 s36, 0xffff0000")
    a("s_cmp_eq_u32 s23, 0")
    a("s_cbranch_scc0 L_k2_silu")
    for q in range(32):
        a(f"v_cvt_pk_bf16_f32 v{32+q}, v{ACC+2*q}, v{ACC+2*q+1}")
    a("s_branch L_k2_packed")
    a.label("L_k2_silu")
    a(f"s_mov_b32 s37, {f32bits(-math.log2(math.e)):#x}")
    for q in range(0, 32, 2):
        regs = [ACC + 2 * q + e for e in range(4)]
        a(f"v_cvt_pk_bf16_f32 v10, v{regs[0]}, v{regs[1]}")
        a(f"v_cvt_pk_bf16_f32 v11, v{regs[2]}, v{regs[3]}")
        a(f"v_lshlrev_b32 v{regs[0]}, 16, v10")
        a(f"v_and_b32 v{regs[1]}, s36, v10")
        a(f"v_lshlrev_b32 v{regs[2]}, 16, v11")
        a(f"v_and_b32 v{regs[3]}, s36, v11")
        for e in range(4):
            a(f"v_mul_f32 v{12+e}, s37, v{regs[e]}")
        for e in range(4):
            a(f"v_exp_f32 v{12+e}, v{12+e}")
        for e in range(4):
            a(f"v_add_f32 v{12+e}, 1.0, v{12+e}")
        for e in range(4):
            a(f"v_rcp_f32 v{12+e}, v{12+e}")
        for e in range(4):
            a(f"v_mul_f32 v{12+e}, v{12+e}, v{regs[e]}")
        a(f"v_cvt_pk_bf16_f32 v{32+q}, v12, v13")
        a(f"v_cvt_pk_bf16_f32 v{33+q}, v14, v15")
    a.label("L_k2_packed")
    a("s_lshl_b32 s38, s24, 3")
    a("s_add_u32 s38, s38, s25")
    a("s_lshl_b32 s38, s38, 2")
    a("s_add_u32 s38, s38, s22")
    a("s_lshr_b32 s39, s38, 4")
    a("s_lshl_b32 s39, s39, 2")
    a("s_and_b32 s56, s38, 15")
    a("s_lshl_b32 s56, s56, 1")
    a("s_add_u32 s57, s56, s23")
    a("s_lshl_b32 s57, 1, s57")
    a("s_xor_b32 s58, s23, 1")
    a("s_add_u32 s58, s58, s56")
    a("s_lshl_b32 s58, 1, s58")
    a("s_lshl_b32 s59, s38, 13")
    a(f"s_add_u32 s59, s59, {WS_T:#x}")
    a("s_lshl_b32 s60, s23, 22")
    a("s_add_u32 s61, s59, s60")
    a("s_xor_b32 s60, s60, 0x400000")
    a("s_add_u32 s62, s59, s60")
    a("s_add_u32 s63, s61, 4096")
    a("s_add_u32 s64, s62, 4096")
    a("buffer_load_dword v10, off, s[52:55], s39 sc1")
    a("s_waitcnt vmcnt(0)")
    a("v_readfirstlane_b32 s65, v10")
    a("s_and_b32 s65, s65, s58")
    a("s_cbranch_scc1 L_k2_combine")
    for q in range(8):
        so = 61 if q < 4 else 63
        a(f"buffer_store_dwordx4 v[{32+4*q}:{35+4*q}], v6, s[16:19], s{so} offen offset:{(q&3)*1024} sc1")
    a("s_waitcnt vmcnt(0)")
    a("v_mov_b32 v10, s57")
    a("s_mov_b64 s[66:67], exec")
    a("s_mov_b64 exec, 1")
    a("buffer_atomic_or v10, off, s[52:55], s39 sc0 sc1")
    a("s_waitcnt vmcnt(0)")
    a("s_mov_b64 exec, s[66:67]")
    a("s_nop 1")
    a("v_readfirstlane_b32 s65, v10")
    a("s_and_b32 s65, s65, s58")
    a("s_cbranch_scc0 L_k2_end")
    a.label("L_k2_combine")
    for q in range(8):
        so = 62 if q < 4 else 64
        a(f"buffer_load_dwordx4 v[{64+4*q}:{67+4*q}], v6, s[16:19], s{so} offen offset:{(q&3)*1024} sc1")
    for q in range(8):
        a(f"s_waitcnt vmcnt({7-q})")
        for e in range(4):
            m, o, x = 32 + 4 * q + e, 64 + 4 * q + e, 128 + 4 * q + e
            a(f"v_lshlrev_b32 v10, 16, v{m}")
            a(f"v_and_b32 v11, s36, v{m}")
            a(f"v_lshlrev_b32 v12, 16, v{o}")
            a(f"v_and_b32 v13, s36, v{o}")
            a(f"v_mul_f32 v10, v10, v12")
            a(f"v_mul_f32 v11, v11, v13")
            a(f"v_cvt_pk_bf16_f32 v10, v10, v11")
            a(f"v_lshlrev_b32 v12, 16, v{x}")
            a(f"v_and_b32 v13, s36, v{x}")
            a(f"v_and_b32 v11, s36, v10")
            a(f"v_lshlrev_b32 v10, 16, v10")
            a(f"v_add_f32 v10, v10, v12")
            a(f"v_add_f32 v11, v11, v13")
            a(f"v_cvt_pk_bf16_f32 v{96+4*q+e}, v10, v11")
    for q in range(8):
        a(f"buffer_store_dwordx4 v[{96+4*q}:{99+4*q}], v9, s[48:51], s34 offen offset:{q*32}")
    a.label("L_k2_end")
    a("s_endpgm")
    return name, (160, 160, 72)


def main():
    from gen_k1 import gen_k1
    out = sys.argv[1] if len(sys.argv) > 1 else f"cdna_kernels/{NAME}.s"
    for arg in sys.argv[2:]:
        k, v = arg.split("=")
        OPT[k] = int(v)
    hdr = open(f"cdna_kernels/{NAME}.s.ref").read().splitlines()
    a = Asm()
    for l in hdr:
        if l.startswith("; Override") or l.startswith("; grid=") or "@launch" in l or not l.startswith(";"):
            if not l.startswith(";"):
                break
            continue
        a.raw(l)
    a.raw("; @launch kernel=prep_kernel grid=(384,1,1) block=(256,1,1) lds=256")
    a.raw("; @launch kernel=up_kernel grid=(256,1,1) block=(256,1,1) lds=163840")
    a.raw("; @launch kernel=down_kernel grid=(256,1,1) block=(256,1,1) lds=131072")
    a.raw('.amdgcn_target "amdgcn-amd-amdhsa--gfx950"')
    a.raw(".text")
    ks = [gen_k0(a), gen_k1(a, OPT), gen_k2(a)]
    a.raw('.section .rodata,"a"')
    for name, (v, ag, s) in ks:
        kd(a, name, v, ag, s)
    open(out, "w").write(a.text())
    print("wrote", out, len(a.text()), "bytes")


if __name__ == "__main__":
    main()
```
